```python
import torch

def _softmax(x, axis=-1):
    return torch.softmax(x, dim=axis)

def _gelu(x):
    return torch.nn.functional.gelu(x, approximate='tanh')

def _silu(x):
    return torch.nn.functional.silu(x)

def _sigmoid(x):
    return torch.sigmoid(x)

def _layernorm(x, axis=-1, eps=1e-05):
    m = x.mean(dim=axis, keepdim=True)
    v = x.var(dim=axis, keepdim=True, unbiased=False)
    return (x - m) / torch.sqrt(v + eps)

def _scatter_add(tgt, idx, src, axis=0):
    return tgt.clone().index_add_(axis, idx, src)

def _segment_sum(src, seg, n):
    out = torch.zeros((n,) + src.shape[1:], dtype=src.dtype)
    return out.index_add_(0, seg, src)

def _pad(x, pw):
    flat = tuple((v for pair in reversed(pw) for v in pair))
    return torch.nn.functional.pad(x, flat)
kernel_name = 'standalone__varlen_attn_packed__ragged'

def setup_inputs():

    _w = lambda a: (lambda t: t.to(torch.bfloat16) if t.is_floating_point() else t)(torch.as_tensor(a))
    cu = torch.tensor([0, 828, 1660, 3299, 3744], dtype=torch.int64)
    T, H, D = (int(cu[-1]), 16, 128)
    return {'q': _w((lambda *s: torch.randn(*s, dtype=torch.bfloat16) * 0.8)(T, H, D)), 'k': _w((lambda *s: torch.randn(*s, dtype=torch.bfloat16) * 0.8)(T, H, D)), 'v': _w((lambda *s: torch.randn(*s, dtype=torch.bfloat16) * 0.05)(T, H, D)), 'cu': _w(cu)}

def reference(q, k, v, cu):
    T, H, D = q.shape
    out = torch.zeros_like(q)
    scale = D ** (-0.5)
    outs = []
    for i in range(len(cu) - 1):
        s, e = (int(cu[i]), int(cu[i + 1]))
        qi, ki, vi = (q[s:e].clone(), k[s:e].clone(), v[s:e].clone())
        p = _softmax(torch.einsum('qhd,khd->hqk', qi, ki) * scale, axis=-1)
        outs.append(torch.einsum('hqk,khd->qhd', p, vi))
    return torch.concatenate(outs, axis=0)
```

```python
import sys
def gen(pattern=[''], iters=200, unroll=2, shape=32, accmode='std', nwg=256, waves=4, xcdmask=None):
    L = []
    A = L.append
    A(f"; @launch grid=({nwg},1,1) block=({waves*64},1,1) lds=131072")
    A('.amdgcn_target "amdgcn-amd-amdhsa--gfx950"')
    A(".text\n.globl mb_kernel\n.p2align 8\n.type mb_kernel,@function\nmb_kernel:")
    if xcdmask is not None:
        A("s_and_b32 s3, s2, 7")
        A("s_lshl_b32 s3, 1, s3")
        A(f"s_and_b32 s3, s3, {xcdmask}")
        A("s_cbranch_scc0 L_end")
    A("s_load_dwordx2 s[4:5], s[0:1], 32")
    A("s_load_dwordx2 s[6:7], s[0:1], 0")
    A("s_load_dwordx2 s[32:33], s[0:1], 8")
    A("s_load_dwordx2 s[34:35], s[0:1], 16")
    A("s_load_dwordx2 s[36:37], s[0:1], 24")
    A("s_waitcnt lgkmcnt(0)")
    A("s_mov_b32 s8, s4\ns_mov_b32 s9, s5\ns_mov_b32 s10, 0x100000\ns_mov_b32 s11, 0x00020000")
    A("s_mov_b32 s24, s6\ns_mov_b32 s25, s7\ns_mov_b32 s26, 0x1000000\ns_mov_b32 s27, 0x00020000")
    A("s_mov_b32 s40, s32\ns_mov_b32 s41, s33\ns_mov_b32 s42, 0x1000000\ns_mov_b32 s43, 0x00020000")
    A("s_mov_b32 s44, s34\ns_mov_b32 s45, s35\ns_mov_b32 s46, 0x1000000\ns_mov_b32 s47, 0x00020000")
    A("s_mov_b32 s48, s36\ns_mov_b32 s49, s37\ns_mov_b32 s50, 0x1000000\ns_mov_b32 s51, 0x00020000")
    for i in range(1, 200):
        A(f"v_mov_b32 v{i}, 0")
    A("v_lshlrev_b32 v206, 4, v0")
    for i in range(64, 96, 4):
        A(f"buffer_load_dwordx4 a[{i}:{i+3}], v206, s[24:27], 0 offen offset:{(i*64)%4096}")
    for i in range(96, 128, 4):
        A(f"buffer_load_dwordx4 a[{i}:{i+3}], v206, s[40:43], 0 offen offset:{(i*64)%4096}")
    for i in range(128, 160, 4):
        A(f"buffer_load_dwordx4 a[{i}:{i+3}], v206, s[44:47], 0 offen offset:{(i*64)%4096}")
    for i in range(184, 192, 4):
        A(f"buffer_load_dwordx4 v[{i}:{i+3}], v206, s[48:51], 0 offen offset:{(i*64)%4096}")
    A("v_lshrrev_b32 v207, 6, v0")
    A("v_readfirstlane_b32 s30, v207")
    A("s_lshl_b32 s30, s30, 13")
    for i in range(8):
        A(f"s_add_u32 m0, s30, {i*1024}")
        A("s_nop 0")
        A(f"buffer_load_dwordx4 v206, s[24:27], 0 offen offset:{i*16} lds")
    for i in range(48, 64):
        A(f"v_cvt_f32_u32 v{i}, v0")
        A(f"v_mul_f32 v{i}, {-0.013*(i-40):.4f}, v{i}")
    for i in range(160, 176):
        A(f"v_cvt_f32_u32 v{i}, v0")
        A(f"v_mul_f32 v{i}, {0.0013*(i-150):.4f}, v{i}")
    A("s_waitcnt vmcnt(0)")
    A("v_lshlrev_b32 v200, 4, v0")
    A("v_and_b32 v200, 0x3ff, v200")
    A("v_and_b32 v205, 63, v0")
    A("v_lshlrev_b32 v205, 3, v205")
    A("s_mov_b32 s12, 0")
    A("s_mov_b32 s31, 0")
    A("s_add_u32 m0, s30, 65536")
    A("s_barrier")
    A("s_memtime s[14:15]")
    A("s_memrealtime s[18:19]")
    A("s_waitcnt lgkmcnt(0)")
    A(".p2align 6")
    A("L_loop:")
    for u in range(unroll):
      cnt = dict(e=0,a=0,c=0,k=0,t=0,f=0,K=0,T=0,m=0,n=0,d=0,w=0)
      nm = 16 if shape == 32 else 32
      for i in range(nm):
        if shape == 32:
            if i < 8:
                c = "v[32:47]" if i == 0 else "v[16:31]"
                A(f"v_mfma_f32_32x32x16_bf16 v[16:31], a[{64+i*4}:{64+i*4+3}], a[{96+i*4}:{96+i*4+3}], {c}")
            else:
                j = i - 8
                if accmode == 'std': db, kk = j % 4, j // 4
                elif accmode == 'pair': db, kk = j // 2, j % 2
                elif accmode == 'one': db, kk = 0, j % 2
                d = 64 + db * 16
                A(f"v_mfma_f32_32x32x16_bf16 v[{d}:{d+15}], a[{128+j*4}:{128+j*4+3}], v[{184+kk*4}:{184+kk*4+3}], v[{d}:{d+15}]")
        else:
            if i < 16:
                if accmode == 'std': blk, kk = i % 4, i // 4
                else: blk, kk = i // 4, i % 4
                d = 16 + blk * 4
                c = f"v[{32+blk*4}:{32+blk*4+3}]" if kk == 0 else f"v[{d}:{d+3}]"
                A(f"v_mfma_f32_16x16x32_bf16 v[{d}:{d+3}], a[{64+((blk//2)*4+kk)*4}:{64+((blk//2)*4+kk)*4+3}], a[{96+((blk%2)*4+kk)*4}:{96+((blk%2)*4+kk)*4+3}], {c}")
            else:
                j = i - 16
                d = 64 + j * 4
                A(f"v_mfma_f32_16x16x32_bf16 v[{d}:{d+3}], a[{128+(j//2)*4}:{128+(j//2)*4+3}], v[{184+(j%2)*4}:{184+(j%2)*4+3}], v[{d}:{d+3}]")
        for ch in pattern[i % len(pattern)]:
            n = cnt[ch]; cnt[ch] += 1
            if ch == 'e': A(f"v_exp_f32 v{144+n%16}, v{48+n%16}")
            elif ch == 'a': A(f"v_add_f32 v3, v3, v{160+n%16}")
            elif ch == 'c': A(f"v_cvt_pk_bf16_f32 v{176+n%8}, v{160+2*(n%8)}, v{161+2*(n%8)}")
            elif ch == 'f': A(f"v_fma_f32 v{128+n%16}, v{48+n%16}, v1, v2")
            elif ch == 'n': A(f"s_nop 0")
            elif ch == 'k': A(f"ds_read_b128 a[{(n%8)*4}:{(n%8)*4+3}], v200 offset:{(n%8)*1024}")
            elif ch == 't': A(f"ds_read_b64_tr_b16 a[{32+(n%16)*2}:{32+(n%16)*2+1}], v205 offset:{16384+(n%16)*512}")
            elif ch == 'd': A(f"buffer_load_dwordx4 v206, s[24:27], s31 offen lds")
            elif ch == 'w': A(f"s_waitcnt vmcnt(8)")
    A("s_add_u32 s31, s31, 4096")
    A("s_and_b32 s31, s31, 0xfffff")
    A("s_add_u32 s12, s12, 1")
    A(f"s_cmp_lt_u32 s12, {iters}")
    A("s_cbranch_scc1 L_loop")
    A("s_memtime s[16:17]")
    A("s_memrealtime s[20:21]")
    A("s_waitcnt lgkmcnt(0) vmcnt(0)")
    A("s_sub_u32 s16, s16, s14")
    A("s_sub_u32 s20, s20, s18")
    A("v_lshrrev_b32 v201, 6, v0")
    A("s_lshl_b32 s3, s2, 3")
    A("v_add_u32 v201, s3, v201")
    A("v_lshlrev_b32 v201, 3, v201")
    A("v_mov_b32 v202, s16\nv_mov_b32 v203, s20")
    A("v_and_b32 v204, 63, v0\nv_cmp_eq_u32 vcc, 0, v204\ns_and_saveexec_b64 s[22:23], vcc")
    A("buffer_store_dwordx2 v[202:203], v201, s[8:11], 0 offen")
    A("s_waitcnt vmcnt(0)")
    A("L_end:")
    A("s_endpgm")
    A('.section .rodata,"a"\n.p2align 6\n.amdhsa_kernel mb_kernel')
    A(".amdhsa_next_free_vgpr 512\n.amdhsa_next_free_sgpr 102\n.amdhsa_accum_offset 256\n.amdhsa_group_segment_fixed_size 0\n.amdhsa_kernarg_size 56\n.amdhsa_user_sgpr_count 2\n.amdhsa_user_sgpr_kernarg_segment_ptr 1\n.amdhsa_system_sgpr_workgroup_id_x 1\n.end_amdhsa_kernel")
    return "\n".join(L) + "\n"

P = ['tkea', 'tcea']
variants = {
 'm32_std': dict(),
 'm32_pair': dict(accmode='pair'),
 'm32_one': dict(accmode='one'),
 'm16_std': dict(shape=16),
 'm16_chain': dict(shape=16, accmode='chain'),
 'f32_std': dict(pattern=P),
 'f32_pair': dict(pattern=P, accmode='pair'),
 'f32_halfLDS': dict(pattern=['tea','kcea', 'tea', 'cea']),
 'f32_noLDS': dict(pattern=['ea','cea']),
 'f16_std': dict(pattern=['te', 'ka', 'te', 'ca'], shape=16),
 'f16_halfLDS': dict(pattern=['te', 'ka', 'e', 'ca', 'te', 'a', 'e', 'ca'], shape=16),
 'f16_chain_halfLDS': dict(pattern=['te', 'ka', 'e', 'ca', 'te', 'a', 'e', 'ca'], shape=16, accmode='chain'),
 'f32_128wg': dict(pattern=P, nwg=128),
 'f32_4xcd': dict(pattern=P, xcdmask=0x0f),
 'f32_192wg': dict(pattern=P, nwg=192),
 'f32_64wg': dict(pattern=P, nwg=64),
}
UN = 2
if __name__ == '__main__':
    for n, v in variants.items():
        open(f"mb5_{n}.s", "w").write(gen(unroll=UN, **v))
```

```python
import mb5_gen, re
def gen(gaps_list, ones=False, iters=200):
    base = mb5_gen.gen(pattern=[''], iters=iters, unroll=1, shape=16, accmode='chain')
    pre, rest = base.split("L_loop:\n")
    post = "s_add_u32 s31, s31, 4096" + rest.split("s_add_u32 s31, s31, 4096")[1]
    pre = pre.replace("s_barrier\n", "v_mov_b32 v220, 0x3f803f80\nv_accvgpr_write_b32 a160, v220\nv_accvgpr_write_b32 a161, v220\nv_accvgpr_write_b32 a162, v220\nv_accvgpr_write_b32 a163, v220\nv_mov_b32 v212,0\nv_mov_b32 v213,0\nv_mov_b32 v214,0\nv_mov_b32 v215,0\ns_mov_b64 vcc, 0\ns_nop 4\ns_barrier\n")
    L = []
    A = L.append
    cnt = dict(e=0,a=0,c=0,k=0,t=0,d=0,w=0,o=0,x=0,b=0,s=0)
    for mu, gaps in enumerate(gaps_list):
        nm = 17 if ones else 16
        assert len(gaps) == nm, (len(gaps), nm)
        for i in range(nm):
            if i < 8:
                blk, kk = i // 4, i % 4
                d = 16 + (mu % 2) * 8 + blk * 4
                c = f"v[32:35]" if kk == 0 else f"v[{d}:{d+3}]"
                A(f"v_mfma_f32_16x16x32_bf16 v[{d}:{d+3}], a[{64+(blk*4+kk)*4}:{64+(blk*4+kk)*4+3}], a[{96+((mu%2)*4+kk)*4}:{96+((mu%2)*4+kk)*4+3}], {c}")
            elif i < 16:
                j = i - 8
                d = 64 + (mu % 2) * 32 + j * 4
                A(f"v_mfma_f32_16x16x32_bf16 v[{d}:{d+3}], a[{128+j*4}:{128+j*4+3}], v[{184+(mu%2)*4}:{184+(mu%2)*4+3}], v[{d}:{d+3}]")
            else:
                A(f"v_mfma_f32_16x16x32_bf16 v[212:215], a[160:163], v[{184+(mu%2)*4}:{184+(mu%2)*4+3}], v[212:215]")
            for ch in gaps[i]:
                n = cnt[ch]; cnt[ch] += 1
                if ch == 'e': A(f"v_exp_f32 v{144+n%16}, v{48+n%16}")
                elif ch == 'a': A(f"v_add_f32 v3, v3, v{160+n%16}")
                elif ch == 'c': A(f"v_cvt_pk_bf16_f32 v{176+n%8}, v{160+2*(n%8)}, v{161+2*(n%8)}")
                elif ch == 'o': A(f"v_or3_b32 v4, v{176+n%8}, v{177}, v{178}")
                elif ch == 'x': A(f"v_cmp_le_u32 vcc, 0x40000000, v5")
                elif ch == 'b': A(f"s_cbranch_vccnz L_end")
                elif ch == 's': A(f"s_add_u32 s60, s60, 1")
                elif ch == 'k': A(f"ds_read_b128 a[{(n%8)*4}:{(n%8)*4+3}], v200 offset:{(n%8)*1024}")
                elif ch == 't': A(f"ds_read_b64_tr_b16 a[{32+(n%16)*2}:{32+(n%16)*2+1}], v205 offset:{16384+(n%16)*512}")
                elif ch == 'd': A(f"buffer_load_dwordx4 v206, s[24:27], s31 offen lds")
                elif ch == 'w': A(f"s_waitcnt vmcnt(16)")
    print(cnt)
    return pre + "L_loop:\n" + "\n".join(L) + "\n" + post

def spread(nm, valu_nonexp, lds, mu):
    gaps = [''] * nm
    for i in range(8): gaps[2*i] = 'e'
    odd = [i for i in range(nm) if gaps[i] == '']
    items = list(lds) + list(valu_nonexp)
    per = [[] for _ in odd]
    for j, it in enumerate(lds): per[j % len(odd)].append(it)
    k = len(lds)
    for it in valu_nonexp:
        j = min(range(len(odd)), key=lambda q: len(per[q]))
        per[j].append(it)
    for j, g in enumerate(odd): gaps[g] = ''.join(per[j])
    return gaps

lds5 = ['ttttkktttd', 'ttttkktttd', 'tttkkttkd', 'ttttkktd', 'tttttdddw']
def mk(ones, ldsl):
    gl = []
    for mu in range(5):
        if ones: v = 'cccc' + 'ooo' + 'xb'
        else: v = 'aaaaaaaacccc' + 'xb'
        gl.append(spread(17 if ones else 16, v, ldsl[mu], mu))
    return gl
lds_n25 = ['tttttttkkkd', 'ttttttkkkdd', 'tttttttkkkd', 'ttttttkkkdd', 'ttttttkkkkddw']
lds_n4 =  ['ttttkkd', 'ttttkkd', 'ttttkkd', 'ttttkkd', 'ttttkkdw']
variants = {
 'adds_n25': dict(gaps_list=mk(False, lds_n25), ones=False),
 'ones_n25': dict(gaps_list=mk(True, lds_n25), ones=True),
 'adds_n4': dict(gaps_list=mk(False, lds_n4), ones=False),
 'ones_n4': dict(gaps_list=mk(True, lds_n4), ones=True),
}
UN = 2.5
if __name__ == '__main__':
    for n, v in variants.items():
        open(f"mb5_{n}.s", "w").write(gen(**v))
```

```python
from mb7_gen import *
def strip(l, chs): return [''.join(c for c in s if c not in chs) for s in l]
def mk2(ones, ldsl, v=None):
    gl = []
    for mu in range(5):
        vv = v if v is not None else ('cccc' + 'ooo' + 'xb' if ones else 'aaaaaaaacccc' + 'xb')
        gl.append(spread(17 if ones else 16, vv, ldsl[mu], mu))
    return gl
variants = {
 'ones_n25': dict(gaps_list=mk2(True, lds_n25), ones=True),
 'ones_n25_nodma': dict(gaps_list=mk2(True, strip(lds_n25, 'dw')), ones=True),
 'ones_n25_nodma_nob': dict(gaps_list=mk2(True, strip(lds_n25, 'dw'), 'ccccooox'), ones=True),
 'ones_n25_nob': dict(gaps_list=mk2(True, lds_n25, 'ccccooox'), ones=True),
 'ones_n25_nolds': dict(gaps_list=mk2(True, strip(lds_n25, 'tk')), ones=True),
 'ones_dmaonly': dict(gaps_list=mk2(True, strip(lds_n25, 'tk'), 'cccc'), ones=True),
 'ones_nothing': dict(gaps_list=mk2(True, strip(lds_n25, 'tkdw'), 'cccc'), ones=True),
}
UN = 2.5
if __name__ == '__main__':
    for n, v in variants.items():
        open(f"mb5_{n}.s", "w").write(gen(**v))
```

```python
import mb5_gen
def gen(qk_order, pv_order, iters=100):
    base = mb5_gen.gen(pattern=[''], iters=iters, unroll=1, shape=16, accmode='chain')
    pre, rest = base.split("L_loop:\n")
    post = "s_add_u32 s31, s31, 4096" + rest.split("s_add_u32 s31, s31, 4096")[1]
    L = []
    A = L.append
    def qk(b, kb, kk):
        d = 16 + b*8 + kb*4
        c = "v[40:43]" if kk == 0 else f"v[{d}:{d+3}]"
        qb = 96 + (b % 2) * 16 + kk * 4
        A(f"v_mfma_f32_16x16x32_bf16 v[{d}:{d+3}], a[{64+(kb*4+kk)*4}:{64+(kb*4+kk)*4+3}], a[{qb}:{qb+3}], {c}")
    def pv(b, db):
        d = 64 + b*32 + db*4
        p = 184 + (b % 2) * 4
        A(f"v_mfma_f32_16x16x32_bf16 v[{d}:{d+3}], a[{128+db*4}:{128+db*4+3}], v[{p}:{p+3}], v[{d}:{d+3}]")
    for rep in range(2):
        if qk_order == 'mu_chain':
            qs = [[(b, kb, kk) for kb in (0,1) for kk in range(4)] for b in range(3)]
        elif qk_order == 'mu_kk':
            qs = [[(b, kb, kk) for kk in range(4) for kb in (0,1)] for b in range(3)]
        elif qk_order == 'shareA':
            allq = [(b, kb, kk) for kb in (0,1) for kk in range(4) for b in range(3)]
            qs = [allq[0:8], allq[8:16], allq[16:24]]
        if pv_order == 'mu':
            ps = [[(b, db) for db in range(8)] for b in range(3)]
        else:
            allp = [(b, db) for db in range(8) for b in range(3)]
            ps = [allp[0:8], allp[8:16], allp[16:24]]
        for i in range(3):
            for t in qs[i]: qk(*t)
            for t in ps[i]: pv(*t)
    return pre + "L_loop:\n" + "\n".join(L) + "\n" + post
variants = {f"{a}_{b}": (a, b) for a in ('mu_chain', 'mu_kk', 'shareA') for b in ('mu', 'shareA')}
UN = 6
if __name__ == '__main__':
    for n, (a, b) in variants.items(): open(f"mb5_{n}.s", "w").write(gen(a, b))
```
